```python
import torch

def _softmax(x, axis=-1):
    return torch.softmax(x, dim=axis)
def _gelu(x):
    return torch.nn.functional.gelu(x, approximate="tanh")
def _silu(x):
    return torch.nn.functional.silu(x)
def _sigmoid(x):
    return torch.sigmoid(x)
def _layernorm(x, axis=-1, eps=1e-5):
    m = x.mean(dim=axis, keepdim=True)
    v = x.var(dim=axis, keepdim=True, unbiased=False)
    return (x - m) / torch.sqrt(v + eps)
def _scatter_add(tgt, idx, src, axis=0):
    return tgt.clone().index_add_(axis, idx, src)
def _segment_sum(src, seg, n):
    out = torch.zeros((n,) + src.shape[1:], dtype=src.dtype)
    return out.index_add_(0, seg, src)
def _pad(x, pw):
    flat = tuple(v for pair in reversed(pw) for v in pair)
    return torch.nn.functional.pad(x, flat)

kernel_name = 'concat_heads__gqa_block_cached__gqa_block_cached__near_ridge'

def setup_inputs():

    _w = (lambda a: (lambda t: t.to(torch.bfloat16) if t.is_floating_point() else t)(torch.as_tensor(a)))
    def _A_setup():
        B, Sq, D = 16, 48, 448
        Hq, Hkv, Sk, Dh = 16, 8, 512, 256
        assert Hq % Hkv == 0, (Hq, Hkv)
        return {
            "x": _w((lambda *s: torch.randn(*s, dtype=torch.bfloat16) * 0.8)(B, Sq, D)),
            "k_cache": _w((lambda *s: torch.randn(*s, dtype=torch.bfloat16) * 0.8)(B, Hkv, Sk, Dh)),
            "v_cache": _w((lambda *s: torch.randn(*s, dtype=torch.bfloat16) * 0.05)(B, Hkv, Sk, Dh)),
            "wq": _w((lambda *s: torch.randn(*s, dtype=torch.bfloat16) * 0.8)(D, Hq * Dh) * (D ** -0.5)),
            "wo": _w((lambda *s: torch.randn(*s, dtype=torch.bfloat16) * 0.05)(Hq * Dh, D) * ((Hq * Dh) ** -0.5)),
        }
    _A_in = _A_setup()

    def _B_setup():
        B, Sq, D = 16, 48, 448
        Hq, Hkv, Sk, Dh = 16, 8, 512, 256
        assert Hq % Hkv == 0, (Hq, Hkv)
        return {
            "x": _w((lambda *s: torch.randn(*s, dtype=torch.bfloat16) * 0.8)(B, Sq, D)),
            "k_cache": _w((lambda *s: torch.randn(*s, dtype=torch.bfloat16) * 0.8)(B, Hkv, Sk, Dh)),
            "v_cache": _w((lambda *s: torch.randn(*s, dtype=torch.bfloat16) * 0.05)(B, Hkv, Sk, Dh)),
            "wq": _w((lambda *s: torch.randn(*s, dtype=torch.bfloat16) * 0.8)(D, Hq * Dh) * (D ** -0.5)),
            "wo": _w((lambda *s: torch.randn(*s, dtype=torch.bfloat16) * 0.05)(Hq * Dh, D) * ((Hq * Dh) ** -0.5)),
        }
    _B_in = _B_setup()

    return {
        "A_x": _A_in["x"],
        "A_k_cache": _A_in["k_cache"],
        "A_v_cache": _A_in["v_cache"],
        "A_wq": _A_in["wq"],
        "A_wo": _A_in["wo"],
        "B_x": _B_in["x"],
        "B_k_cache": _B_in["k_cache"],
        "B_v_cache": _B_in["v_cache"],
        "B_wq": _B_in["wq"],
        "B_wo": _B_in["wo"],
    }

def reference(A_x, A_k_cache, A_v_cache, A_wq, A_wo, B_x, B_k_cache, B_v_cache, B_wq, B_wo):
    def _A_ref(x, k_cache, v_cache, wq, wo):
        B, Sq, D = x.shape
        Hq, Dh = 16, 256
        Hkv = k_cache.shape[1]
        rep = Hq // Hkv
        q = (lambda x, *d: x.permute(*d))((x @ wq).reshape(B, Sq, Hq, Dh), 0, 2, 1, 3)
        k = (lambda x, n, axis: torch.repeat_interleave(x, n, dim=axis))(k_cache, rep, axis=1)
        v = (lambda x, n, axis: torch.repeat_interleave(x, n, dim=axis))(v_cache, rep, axis=1)
        scores = torch.einsum("bhqd,bhkd->bhqk", q, k) * (Dh ** -0.5)
        p = _softmax(scores, axis=-1)
        o = torch.einsum("bhqk,bhkd->bhqd", p, v)
        return (lambda x, *d: x.permute(*d))(o, 0, 2, 1, 3).reshape(B, Sq, Hq * Dh) @ wo

    def _B_ref(x, k_cache, v_cache, wq, wo):
        B, Sq, D = x.shape
        Hq, Dh = 16, 256
        Hkv = k_cache.shape[1]
        rep = Hq // Hkv
        q = (lambda x, *d: x.permute(*d))((x @ wq).reshape(B, Sq, Hq, Dh), 0, 2, 1, 3)
        k = (lambda x, n, axis: torch.repeat_interleave(x, n, dim=axis))(k_cache, rep, axis=1)
        v = (lambda x, n, axis: torch.repeat_interleave(x, n, dim=axis))(v_cache, rep, axis=1)
        scores = torch.einsum("bhqd,bhkd->bhqk", q, k) * (Dh ** -0.5)
        p = _softmax(scores, axis=-1)
        o = torch.einsum("bhqk,bhkd->bhqd", p, v)
        return (lambda x, *d: x.permute(*d))(o, 0, 2, 1, 3).reshape(B, Sq, Hq * Dh) @ wo

    a = _A_ref(A_x, A_k_cache, A_v_cache, A_wq, A_wo)
    b = _B_ref(B_x, B_k_cache, B_v_cache, B_wq, B_wo)
    return torch.concatenate([a, b], axis=-1)
```

```python
class Asm:
    def __init__(self):
        self.lines = []
        self.nlab = 0
    def __call__(self, s=''):
        for l in s.split('\n'):
            self.lines.append('    ' + l.strip() if l.strip() and not l.strip().endswith(':') else l.strip())
    def label(self, base='L'):
        self.nlab += 1
        return f'{base}_{self.nlab}'
    def text(self): return '\n'.join(self.lines) + '\n'

def vr(a, n=1): return f'v{a}' if n == 1 else f'v[{a}:{a+n-1}]'
def sr(a, n=1): return f's{a}' if n == 1 else f's[{a}:{a+n-1}]'
def ar(a, n=1): return f'a{a}' if n == 1 else f'a[{a}:{a+n-1}]'

def kernel_file(kernels, header=''):
    o = header
    if len(kernels) == 1 and not kernels[0].get('list'):
        k = kernels[0]
        o += f"; @launch grid=({k['grid']},1,1) block=({k['block']},1,1) lds={k['lds']}\n"
    else:
        for k in kernels:
            o += f"; @launch kernel={k['name']} grid=({k['grid']},1,1) block=({k['block']},1,1) lds={k['lds']}\n"
    o += '.amdgcn_target "amdgcn-amd-amdhsa--gfx950"\n.text\n'
    for k in kernels:
        o += f".globl {k['name']}\n.p2align 8\n.type {k['name']},@function\n{k['name']}:\n{k['body']}"
    o += '.section .rodata,"a"\n'
    for k in kernels:
        nv = k['vgpr']; na = k.get('agpr', 0)
        acc = (nv + 3) // 4 * 4
        tot = acc + na if na else nv
        o += f""".p2align 6
.amdhsa_kernel {k['name']}
  .amdhsa_next_free_vgpr {tot}
  .amdhsa_next_free_sgpr {k.get('sgpr', 102)}
  .amdhsa_accum_offset {acc}
  .amdhsa_group_segment_fixed_size 0
  .amdhsa_kernarg_size 104
  .amdhsa_user_sgpr_count 2
  .amdhsa_user_sgpr_kernarg_segment_ptr 1
  .amdhsa_system_sgpr_workgroup_id_x 1
.end_amdhsa_kernel
"""
    return o
```

```python
import sys
from asmlib import *
import hazard

KNAME = 'concat_heads__gqa_block_cached__gqa_block_cached__near_ridge_kernel'

S_WG = 2
sX, sWQ, sK, sV, sWO, sST = 36, 40, 44, 48, 52, 56
sR = 60
sJ = 67
sC = 74
sCO = 78
sKG = 82
sWL = 86
sW = 87
sOFF = 88
sB, sKVH, sBR, sROT = 89, 90, 91, 92
sSC = 94
sT0, sT1, sT2 = 96, 97, 98
vTID, vL = 0, 1
vDQ, vDK, vDV, vDO = 2, 6, 10, 14
vRW = 18
vRK = 22
vRV = 30
vRO = 38
vSW = 40
vSP = 41
vS0 = 42
vSQ = 43
vAL = 44
vMC = 50
vT = 44
vTMP = 56
vS = 64
aX = 0
aQA = 168
aQF = 192
aBUF = 216
NBUF = 8
aOUT = 0
aOF = 84
RING = 8
SCR = RING * 16384
STAT = SCR + 24576
LDS_BYTES = STAT + 6144

def Sreg(T, qt): return vS + (T * 3 + qt) * 4
def Preg(kg, ks2, qt): return Sreg(4 * kg + 2 * ks2, qt)
_free = [Sreg(T, qt) for T in range(1, 16, 2) for qt in range(3)]
def PVreg(tau, qt): return _free[tau * 3 + qt]
PXT = _free[12:18]

class G:
    def __init__(s, opt):
        s.o = opt
        s.a = Asm()
        s.vm = []
        s.lg = []
        s.nbar = 0
    def __call__(s, t): s.a(t)
    def vmem(s, t, tag):
        s.a(t); s.vm.append(tag)
    def wait_vm(s, tag):
        idx = [i for i, x in enumerate(s.vm) if x == tag]
        if not idx: return
        n = len(s.vm) - 1 - idx[-1]
        assert n <= 63
        s.a(f's_waitcnt vmcnt({n})')
        s.vm = s.vm[idx[-1] + 1:]
    def wait_vm_all(s):
        s.a('s_waitcnt vmcnt(0)'); s.vm = []
    def ds(s, t, tag):
        s.a(t); s.lg.append(tag)
    def wait_lg(s, tag):
        idx = [i for i, x in enumerate(s.lg) if x == tag]
        if not idx: return
        n = len(s.lg) - 1 - idx[-1]
        s.a(f's_waitcnt lgkmcnt({min(n, 15)})')
        if n > 15: s.lg = s.lg[-15:]
        else: s.lg = s.lg[idx[-1] + 1:]
    def wait_lg_all(s):
        if s.lg: s.a('s_waitcnt lgkmcnt(0)')
        s.lg = []
    def barrier(s):
        s.a('s_barrier'); s.nbar += 1

def prologue(g):
    g(f"""
    s_cmp_ge_u32 s2, 256
    s_cbranch_scc1 L_end
    s_load_dwordx8 s[8:15], s[0:1], 0
    s_load_dwordx2 s[16:17], s[0:1], 32
    s_load_dwordx8 s[20:27], s[0:1], 40
    s_load_dwordx2 s[18:19], s[0:1], 72
    s_load_dwordx2 s[28:29], s[0:1], 80
    s_load_dwordx2 s[30:31], s[0:1], 96
    s_load_dwordx2 s[32:33], s[0:1], 88
    v_lshrrev_b32 v{vTMP}, 6, v0
    v_and_b32 v{vL}, 63, v0
    s_and_b32 s{sT0}, s2, 7
    v_readfirstlane_b32 s{sW}, v{vTMP}
    s_lshr_b32 s{sT1}, s2, 3
    s_lshr_b32 s{sBR}, s{sT0}, 2
    s_and_b32 s{sT0}, s{sT0}, 3
    s_lshl_b32 s{sT0}, s{sT0}, 1
    s_and_b32 s{sKVH}, s{sT1}, 1
    s_add_u32 s{sKVH}, s{sKVH}, s{sT0}
    s_lshr_b32 s{sB}, s{sT1}, 1
    s_lshl_b32 s{sWL}, s{sW}, 12
    ; rot = b mod 7
    s_mov_b32 s{sROT}, s{sB}
    s_cmp_ge_u32 s{sROT}, 7
    s_cselect_b32 s{sT0}, 7, 0
    s_sub_u32 s{sROT}, s{sROT}, s{sT0}
    s_cmp_ge_u32 s{sROT}, 7
    s_cselect_b32 s{sT0}, 7, 0
    s_sub_u32 s{sROT}, s{sROT}, s{sT0}
    """)
    if not g.o.get('rot', True):
        g(f's_mov_b32 s{sROT}, 0')
    for i in range(7):
        g(f"""
        s_add_u32 s{sT0}, s{sROT}, {i}
        s_cmp_ge_u32 s{sT0}, 7
        s_cselect_b32 s{sT1}, 7, 0
        s_sub_u32 s{sT0}, s{sT0}, s{sT1}
        s_lshl_b32 s{sR+i}, s{sT0}, 19
        s_lshl_b32 s{sJ+i}, s{sT0}, 7
        """)
    for c in range(4):
        if g.o.get('rot', True):
            g(f"s_add_u32 s{sT0}, s{sB}, {c}\ns_and_b32 s{sT0}, s{sT0}, 3")
        else:
            g(f"s_mov_b32 s{sT0}, {c}")
        g(f"s_lshl_b32 s{sC+c}, s{sT0}, 7\ns_mul_i32 s{sCO+c}, s{sT0}, 57344")
        g(f"s_mov_b32 s{sKG+c}, {c*65536}")
    g(f"""
    s_waitcnt lgkmcnt(0)
    s_cmp_eq_u32 s{sBR}, 0
    s_cselect_b64 s[8:9], s[8:9], s[20:21]
    s_cselect_b64 s[10:11], s[10:11], s[22:23]
    s_cselect_b64 s[12:13], s[12:13], s[24:25]
    s_cselect_b64 s[14:15], s[14:15], s[26:27]
    s_cselect_b64 s[16:17], s[16:17], s[18:19]
    ; x SRD
    s_mul_i32 s{sT0}, s{sB}, 43008
    s_add_u32 s{sX}, s8, s{sT0}
    s_addc_u32 s{sX+1}, s9, 0
    s_and_b32 s{sX+1}, s{sX+1}, 0xffff
    s_mov_b32 s{sX+2}, 43008
    s_mov_b32 s{sX+3}, 0x20000
    ; K, V SRD
    s_lshl_b32 s{sT0}, s{sB}, 3
    s_add_u32 s{sT0}, s{sT0}, s{sKVH}
    s_lshl_b32 s{sT0}, s{sT0}, 18
    s_add_u32 s{sK}, s10, s{sT0}
    s_addc_u32 s{sK+1}, s11, 0
    s_and_b32 s{sK+1}, s{sK+1}, 0xffff
    s_mov_b32 s{sK+2}, 0x40000
    s_mov_b32 s{sK+3}, 0x20000
    s_add_u32 s{sV}, s12, s{sT0}
    s_addc_u32 s{sV+1}, s13, 0
    s_and_b32 s{sV+1}, s{sV+1}, 0xffff
    s_mov_b32 s{sV+2}, 0x40000
    s_mov_b32 s{sV+3}, 0x20000
    s_lshl_b32 s{sT0}, s{sKVH}, 10
    s_add_u32 s{sWQ}, s14, s{sT0}
    s_addc_u32 s{sWQ+1}, s15, 0
    s_and_b32 s{sWQ+1}, s{sWQ+1}, 0xffff
    s_sub_u32 s{sWQ+2}, 3670016, s{sT0}
    s_mov_b32 s{sWQ+3}, 0x20000
    s_mul_i32 s{sT0}, s{sKVH}, 458752
    s_add_u32 s{sWO}, s16, s{sT0}
    s_addc_u32 s{sWO+1}, s17, 0
    s_and_b32 s{sWO+1}, s{sWO+1}, 0xffff
    s_mov_b32 s{sWO+2}, 458752
    s_mov_b32 s{sWO+3}, 0x20000
    s_lshl_b32 s{sT0}, s{sBR}, 4
    s_add_u32 s{sT0}, s{sT0}, s{sB}
    s_lshl_b32 s{sT0}, s{sT0}, 3
    s_add_u32 s{sT0}, s{sT0}, s{sKVH}
    s_mul_i32 s{sT0}, s{sT0}, 86016
    s_add_u32 s{sST}, s30, s{sT0}
    s_addc_u32 s{sST+1}, s31, 0
    s_and_b32 s{sST+1}, s{sST+1}, 0xffff
    s_mov_b32 s{sST+2}, 86016
    s_mov_b32 s{sST+3}, 0x20000
    s_mov_b32 s{sSC}, 0x3db8aa3b
    s_mov_b32 s{sSC+1}, 0x3db8aa3b
    """)
    t = list(range(44, 64))
    L = vL
    vg, vi, vr_, vc4, vlr, vu8 = t[0], t[1], t[2], t[3], t[4], t[5]
    A, B, C_, D = t[6], t[7], t[8], t[9]
    g(f"""
    v_lshrrev_b32 v{vg}, 4, v{L}
    v_and_b32 v{vi}, 15, v{L}
    v_bfe_u32 v{vr_}, v{L}, 2, 2
    v_and_b32 v{vc4}, 3, v{L}
    v_lshrrev_b32 v{vlr}, 3, v{L}
    v_and_b32 v{vu8}, 7, v{L}
    """)
    vx = t[10]
    g(f"""
    s_min_u32 s{sT0}, s{sW}, 2
    s_lshl_b32 s{sT1}, s{sT0}, 4
    v_add_u32 v{A}, s{sT1}, v{vi}
    v_mul_u32_u24 v{A}, 896, v{A}
    v_lshlrev_b32 v{B}, 4, v{vg}
    v_add_u32 v{vx}, v{A}, v{B}
    s_lshl_b32 s{sT2}, s{sT0}, 10
    """)
    g(f"s_cmp_eq_u32 s{sW}, 3\ns_cbranch_scc1 L_skipx")
    for j in range(14):
        i, ks = j >> 1, j & 1
        g(f"s_add_u32 m0, s{sT2}, {j*3072}")
        if ks: g(f"s_add_u32 s{sOFF}, s{sJ+i}, 64")
        else: g(f"s_mov_b32 s{sOFF}, s{sJ+i}")
        g.vmem(f"buffer_load_dwordx4 v{vx}, s[{sX}:{sX+3}], s{sOFF} offen lds", 'x')
    g("L_skipx:")
    for j in range(4):
        g(f"""
        v_lshrrev_b32 v{A}, 1, v{vi}
        v_add_u32 v{B}, {4*((j>>1)&1)}, v{vg}
        v_xor_b32 v{A}, v{A}, v{B}
        v_lshrrev_b32 v{B}, 2, v{A}
        v_lshlrev_b32 v{B}, 9, v{B}
        v_and_b32 v{A}, 3, v{A}
        v_lshlrev_b32 v{A}, 5, v{A}
        v_add_u32 v{A}, v{A}, v{B}
        v_and_b32 v{B}, 1, v{vi}
        v_lshlrev_b32 v{B}, 4, v{B}
        v_add_u32 v{A}, v{A}, v{B}
        s_lshl_b32 s{sT0}, s{sW}, 4
        v_add_u32 v{B}, s{sT0}, v{vg}
        v_lshlrev_b32 v{B}, 13, v{B}
        v_add_u32 v{A}, v{A}, v{B}
        v_add_u32 v{vDQ+j}, {31744*j}, v{A}
        """)
    g(f"""
    s_lshl_b32 s{sT0}, s{sW}, 5
    v_add_u32 v{C_}, s{sT0}, v{vlr}
    v_lshlrev_b32 v{C_}, 9, v{C_}
    v_lshrrev_b32 v{D}, 1, v{vlr}
    """)
    for j in range(4):
        g(f"""
        v_add_u32 v{A}, {4*(j&1)}, v{D}
        v_xor_b32 v{A}, v{A}, v{vu8}
        v_lshlrev_b32 v{A}, 4, v{A}
        v_add_u32 v{A}, v{A}, v{C_}
        v_add_u32 v{vDK+j}, {3072*j}, v{A}
        """)
    g(f"""
    v_and_b32 v{B}, 3, v{D}
    v_lshlrev_b32 v{B}, 1, v{B}
    v_xor_b32 v{B}, v{B}, v{vu8}
    v_lshlrev_b32 v{B}, 4, v{B}
    """)
    for j in range(4):
        g(f"v_add_u32 v{A}, v{B}, v{C_}\nv_add_u32 v{vDV+j}, {3072*j}, v{A}")
    g(f"""
    s_lshr_b32 s{sT0}, s{sW}, 1
    s_lshl_b32 s{sT0}, s{sT0}, 8
    s_and_b32 s{sT1}, s{sW}, 1
    s_lshl_b32 s{sT1}, s{sT1}, 5
    s_add_u32 s{sT0}, s{sT0}, s{sT1}
    v_add_u32 v{A}, s{sT0}, v{vlr}
    v_mul_u32_u24 v{A}, 896, v{A}
    v_add_u32 v{A}, v{A}, v{B}
    """)
    for j in range(4):
        g(f"v_add_u32 v{vDO+j}, {6144*j}, v{A}")
    g(f"""
    v_lshlrev_b32 v{A}, 3, v{vg}
    v_add_u32 v{A}, v{A}, v{vr_}
    v_lshlrev_b32 v{A}, 8, v{A}
    v_lshlrev_b32 v{B}, 3, v{vc4}
    v_add_u32 v{A}, v{A}, v{B}
    v_and_b32 v{B}, 1, v{vg}
    v_lshlrev_b32 v{B}, 2, v{B}
    v_add_u32 v{B}, v{B}, v{vr_}
    s_lshl_b32 s{sT0}, s{sW}, 1
    """)
    for tt in range(2):
        g(f"""
        s_add_u32 s{sT1}, s{sT0}, {tt}
        v_xor_b32 v{C_}, s{sT1}, v{B}
        v_lshlrev_b32 v{C_}, 5, v{C_}
        v_add_u32 v{vRW+2*tt}, v{C_}, v{A}
        v_add_u32 v{vRW+2*tt+1}, 0x10000, v{vRW+2*tt}
        """)
    g(f"""
    s_and_b32 s{sT0}, s{sW}, 1
    s_lshl_b32 s{sT0}, s{sT0}, 6
    v_add_u32 v{A}, s{sT0}, v{vi}
    v_lshlrev_b32 v{A}, 7, v{A}
    v_and_b32 v{B}, 1, v{vg}
    v_lshlrev_b32 v{B}, 3, v{B}
    v_add_u32 v{A}, v{A}, v{B}
    v_lshrrev_b32 v{B}, 1, v{vg}
    v_lshrrev_b32 v{C_}, 1, v{vi}
    v_xor_b32 v{B}, v{B}, v{C_}
    """)
    for ks in range(2):
        for z in range(2):
            k = 2 * ks + z
            g(f"""
            v_xor_b32 v{C_}, {4*ks+2*z}, v{B}
            v_lshlrev_b32 v{C_}, 4, v{C_}
            v_add_u32 v{vRK+2*k}, v{C_}, v{A}
            v_add_u32 v{vRK+2*k+1}, 0x10000, v{vRK+2*k}
            """)
    g(f"""
    v_lshlrev_b32 v{A}, 2, v{vg}
    v_add_u32 v{A}, v{A}, v{vr_}
    v_lshlrev_b32 v{A}, 7, v{A}
    v_lshrrev_b32 v{B}, 1, v{vc4}
    v_lshlrev_b32 v{B}, 4, v{B}
    v_add_u32 v{A}, v{A}, v{B}
    v_and_b32 v{B}, 1, v{vc4}
    v_lshlrev_b32 v{B}, 3, v{B}
    v_add_u32 v{A}, v{A}, v{B}
    v_lshlrev_b32 v{B}, 1, v{vg}
    v_lshrrev_b32 v{C_}, 1, v{vr_}
    v_add_u32 v{B}, v{B}, v{C_}
    v_and_b32 v{B}, 3, v{B}
    s_and_b32 s{sT0}, s{sW}, 1
    s_lshl_b32 s{sT1}, s{sT0}, 13
    s_lshl_b32 s{sT0}, s{sT0}, 1
    """)
    for tau in range(4):
        g(f"""
        s_xor_b32 s{sT2}, s{sT0}, {tau}
        v_xor_b32 v{C_}, s{sT2}, v{B}
        v_lshlrev_b32 v{C_}, 5, v{C_}
        v_add_u32 v{C_}, v{C_}, v{A}
        v_add_u32 v{vRV+2*tau}, s{sT1}, v{C_}
        v_add_u32 v{vRV+2*tau+1}, 0x10000, v{vRV+2*tau}
        """)
    g(f"""
    v_xor_b32 v{C_}, s{sW}, v{B}
    v_lshlrev_b32 v{C_}, 5, v{C_}
    v_add_u32 v{vRO}, v{C_}, v{A}
    v_add_u32 v{vRO+1}, 0x10000, v{vRO}
    v_lshlrev_b32 v{A}, 4, v{L}
    v_add_u32 v{vS0}, {SCR}, v{A}
    s_mul_i32 s{sT0}, s{sW}, 6144
    v_add_u32 v{vSW}, s{sT0}, v{vS0}
    s_xor_b32 s{sT1}, s{sW}, 1
    s_mul_i32 s{sT1}, s{sT1}, 6144
    v_add_u32 v{vSP}, s{sT1}, v{vS0}
    s_and_b32 s{sT1}, s{sW}, 2
    s_mul_i32 s{sT1}, s{sT1}, 6144
    v_add_u32 v{vSQ}, s{sT1}, v{vS0}
    """)

def dma_slot(g, slot, loc):
    kind, c, i = slot
    pol_kv = g.o.get('pol_kv', ' nt'); pol_w = g.o.get('pol_w', '')
    g(f"s_add_u32 m0, s{sWL}, {loc*16384}")
    if kind == 'W':
        g(f"s_add_u32 s{sOFF}, s{sR+i}, s{sC+c}"); srd, vo, pol = sWQ, vDQ, pol_w
    elif kind == 'K':
        g(f"s_add_u32 s{sOFF}, s{sKG+i}, s{sC+c}"); srd, vo, pol = sK, vDK, pol_kv
    elif kind == 'V':
        g(f"s_add_u32 s{sOFF}, s{sKG+i}, s{sC+c}"); srd, vo, pol = sV, vDV, pol_kv
    elif kind == 'O':
        g(f"s_add_u32 s{sOFF}, s{sJ+i}, s{sCO+c}"); srd, vo, pol = sWO, vDO, pol_w
    for j in range(4):
        off = f" offset:{j*1024}" if j else ""
        g.vmem(f"buffer_load_dwordx4 v{vo+j}, s[{srd}:{srd+3}], s{sOFF} offen{off}{pol} lds", slot)

def frags_of(slot, loc):
    kind, c, i = slot
    hi = 1 if loc >= 4 else 0
    base = (loc & 3) * 16384
    out = []
    if kind == 'W':
        for ks in range(2):
            for tt in range(2):
                rd = [('tr', vRW + 2 * tt + hi, base + ks * 8192 + z * 1024, 2 * z) for z in range(2)]
                mf = []
                for qt in range(3):
                    D = f"a[{aQA + (tt*3+qt)*4}:{aQA + (tt*3+qt)*4 + 3}]"
                    j = 2 * i + ks
                    Bop = f"a[{aX + (3*j+qt)*4}:{aX + (3*j+qt)*4 + 3}]"
                    mf.append((D, Bop, i == 0 and ks == 0))
                out.append((rd, mf))
    elif kind == 'K':
        for tt in range(4):
            for ks in range(2):
                rd = [('b64', vRK + 2 * (2 * ks + z) + hi, base + tt * 2048, 2 * z) for z in range(2)]
                mf = []
                for qt in range(3):
                    r = Sreg(4 * i + tt, qt)
                    D = f"v[{r}:{r+3}]"
                    Bop = f"a[{aQF + (ks*3+qt)*4}:{aQF + (ks*3+qt)*4 + 3}]"
                    mf.append((D, Bop, c == 0 and ks == 0))
                out.append((rd, mf))
    elif kind == 'V':
        for ks2 in range(2):
            for tau in range(4):
                rd = [('tr', vRV + 2 * tau + hi, base + (2 * ks2 + z) * 2048, 2 * z) for z in range(2)]
                mf = []
                for qt in range(3):
                    r = PVreg(tau, qt)
                    D = f"v[{r}:{r+3}]"
                    p = Preg(i, ks2, qt)
                    mf.append((D, f"v[{p}:{p+3}]", i == 0 and ks2 == 0))
                out.append((rd, mf))
    elif kind == 'O':
        for kp in range(4):
            rd = [('tr', vRO + hi, base + kp * 4096 + z * 2048, 2 * z) for z in range(2)]
            mf = []
            for qt in range(3):
                r = aOUT + (i * 3 + qt) * 4
                D = f"a[{r}:{r+3}]"
                o = aOF + (c & 1) * 48 + (kp * 3 + qt) * 4
                mf.append((D, f"a[{o}:{o+3}]", c == 0 and kp == 0))
            out.append((rd, mf))
    return out

def emit_read(g, rd, buf, tag):
    kind, vaddr, off, dsto = rd
    d = aBUF + buf * 4 + dsto
    op = 'ds_read_b64_tr_b16' if kind == 'tr' else 'ds_read_b64'
    g.ds(f"{op} a[{d}:{d+1}], v{vaddr} offset:{off}", tag)

def qx_write(g, c):
    t = vTMP
    for qt in range(3):
        for tt in range(2):
            a0 = aQA + (tt * 3 + qt) * 4
            g(f"v_accvgpr_read_b32 v{44}, a{a0}\nv_accvgpr_read_b32 v{45}, a{a0+1}\nv_accvgpr_read_b32 v{46}, a{a0+2}\nv_accvgpr_read_b32 v{47}, a{a0+3}")
            g(f"v_cvt_pk_bf16_f32 v{t+2*tt}, v44, v45\nv_cvt_pk_bf16_f32 v{t+2*tt+1}, v46, v47")
        g.ds(f"ds_write_b128 v{vSW}, v[{t}:{t+3}] offset:{qt*1024}", ('qxw', c))
        t = vTMP + 4 - (t - vTMP) if False else (vTMP if t != vTMP else vTMP + 4)
    g.wait_lg(('qxw', c))
def qx_read(g, c):
    for ks in range(2):
        for qt in range(3):
            d = aQF + (ks * 3 + qt) * 4
            g.ds(f"ds_read_b128 a[{d}:{d+3}], v{vSQ} offset:{ks*6144 + qt*1024}", ('qxr', c))
    g.wait_lg(('qxr', c))

def lane_reduce(g, op, regs, tmp):
    for swp in ('v_permlane16_swap_b32', 'v_permlane32_swap_b32'):
        for k, r in enumerate(regs):
            g(f"v_mov_b32 v{tmp+k}, v{r}")
        for k, r in enumerate(regs):
            g(f"{swp} v{r}, v{tmp+k}")
        for k, r in enumerate(regs):
            g(f"{op} v{r}, v{r}, v{tmp+k}")

def softmax(g, hook=None):
    m = [vMC + q for q in range(3)]
    l = [vMC + 3 + q for q in range(3)]
    for T in range(16):
        for qt in range(3):
            r = Sreg(T, qt)
            if T == 0:
                g(f"v_max3_f32 v{m[qt]}, v{r}, v{r+1}, v{r+2}\nv_max_f32 v{m[qt]}, v{m[qt]}, v{r+3}")
            else:
                g(f"v_max3_f32 v{m[qt]}, v{m[qt]}, v{r}, v{r+1}\nv_max3_f32 v{m[qt]}, v{m[qt]}, v{r+2}, v{r+3}")
    lane_reduce(g, 'v_max_f32', m, vTMP)
    for qt in range(3):
        g(f"v_mul_f32 v{m[qt]}, s{sSC}, v{m[qt]}")
    if hook: hook(0)
    for qt in range(3):
        g(f"v_mov_b32 v{l[qt]}, 0")
    for kg in range(4):
        for ks2 in range(2):
            for qt in range(3):
                T0 = 4 * kg + 2 * ks2
                for T in (T0, T0 + 1):
                    r = Sreg(T, qt)
                    for e in range(4):
                        g(f"v_fma_f32 v{r+e}, v{r+e}, s{sSC}, -v{m[qt]}")
                    for e in range(4):
                        g(f"v_exp_f32 v{r+e}, v{r+e}")
                for T in (T0, T0 + 1):
                    r = Sreg(T, qt)
                    g(f"v_add_f32 v{vTMP}, v{r}, v{r+1}\nv_add_f32 v{vTMP+1}, v{r+2}, v{r+3}\nv_add_f32 v{vTMP}, v{vTMP}, v{vTMP+1}\nv_add_f32 v{l[qt]}, v{l[qt]}, v{vTMP}")
                r0 = Sreg(T0, qt); r1 = Sreg(T0 + 1, qt)
                g(f"v_cvt_pk_bf16_f32 v{r0}, v{r0}, v{r0+1}\nv_cvt_pk_bf16_f32 v{r0+1}, v{r0+2}, v{r0+3}\nv_cvt_pk_bf16_f32 v{r0+2}, v{r1}, v{r1+1}\nv_cvt_pk_bf16_f32 v{r0+3}, v{r1+2}, v{r1+3}")
            if hook: hook(1 + kg * 2 + ks2)
    lane_reduce(g, 'v_add_f32', l, vTMP)
    g(f"""
    s_mul_i32 s{sT0}, s{sW}, 1536
    v_lshlrev_b32 v{vTMP}, 2, v{vL}
    v_add_u32 v{vTMP}, s{sT0}, v{vTMP}
    v_add_u32 v{vTMP}, {STAT}, v{vTMP}
    """)
    for k in range(6):
        g.ds(f"ds_write_b32 v{vTMP}, v{vMC+k} offset:{k*256}", 'statw')
    g.wait_lg('statw')

def stats_read(g):
    g(f"""
    s_xor_b32 s{sT0}, s{sW}, 1
    s_mul_i32 s{sT0}, s{sT0}, 1536
    v_lshlrev_b32 v{vTMP}, 2, v{vL}
    v_add_u32 v{vTMP}, s{sT0}, v{vTMP}
    v_add_u32 v{vTMP}, {STAT}, v{vTMP}
    """)
    for k in range(6):
        g.ds(f"ds_read_b32 v{vTMP+1+k}, v{vTMP} offset:{k*256}", 'statr')
    g.wait_lg('statr')
    for qt in range(3):
        mo, lo = vMC + qt, vMC + 3 + qt
        mp, lp = vTMP + 1 + qt, vTMP + 4 + qt
        M = vTMP
        g(f"""
        v_max_f32 v{M}, v{mo}, v{mp}
        v_sub_f32 v{mo}, v{mo}, v{M}
        v_sub_f32 v{mp}, v{mp}, v{M}
        v_exp_f32 v{mo}, v{mo}
        v_exp_f32 v{mp}, v{mp}
        v_mul_f32 v{lo}, v{lo}, v{mo}
        v_fma_f32 v{lo}, v{lp}, v{mp}, v{lo}
        v_rcp_f32 v{lo}, v{lo}
        v_mul_f32 v{vAL+qt}, v{mo}, v{lo}
        v_mul_f32 v{vAL+3+qt}, v{mp}, v{lo}
        """)

def px1_write(g, c):
    k = 0
    for tau in (2, 3):
        for qt in range(3):
            r = PVreg(tau, qt)
            g.ds(f"ds_write_b128 v{vSW}, v[{r}:{r+3}] offset:{k*1024}", ('px1', c)); k += 1
    g.wait_lg(('px1', c))
def px2(g, c):
    for k in range(6):
        r = PXT[k]
        g.ds(f"ds_read_b128 v[{r}:{r+3}], v{vSP} offset:{k*1024}", ('px2r', c))
    g.wait_lg(('px2r', c))
    for qt in range(3):
        for tau in range(2):
            r = PVreg(tau, qt); p = PXT[tau * 3 + qt]
            for e in range(4):
                g(f"v_mul_f32 v{r+e}, v{r+e}, v{vAL+qt}")
            for e in range(4):
                g(f"v_fma_f32 v{r+e}, v{p+e}, v{vAL+3+qt}, v{r+e}")
        r0 = PVreg(0, qt); r1 = PVreg(1, qt); t = PXT[qt]
        g(f"v_cvt_pk_bf16_f32 v{t}, v{r0}, v{r0+1}\nv_cvt_pk_bf16_f32 v{t+1}, v{r0+2}, v{r0+3}\nv_cvt_pk_bf16_f32 v{t+2}, v{r1}, v{r1+1}\nv_cvt_pk_bf16_f32 v{t+3}, v{r1+2}, v{r1+3}")
        g.ds(f"ds_write_b128 v{vSP}, v[{t}:{t+3}] offset:{qt*1024}", ('px2w', c))
    g.wait_lg(('px2w', c))
def px3(g, c):
    for kp in range(4):
        for qt in range(3):
            d = aOF + (c & 1) * 48 + (kp * 3 + qt) * 4
            g.ds(f"ds_read_b128 a[{d}:{d+3}], v{vS0} offset:{(kp ^ 1) * 6144 + qt * 1024}", ('px3', c))
    g.wait_lg(('px3', c))

def dump_regs(g, file, r0, n, slot0):
    g(f"""
    s_lshl_b32 s{sT0}, s2, 20
    s_add_u32 s{sT0}, s{sT0}, 0x4000000
    s_add_u32 s4, s30, s{sT0}
    s_addc_u32 s5, s31, 0
    s_and_b32 s5, s5, 0xffff
    s_mov_b32 s6, 0x100000
    s_mov_b32 s7, 0x20000
    v_lshlrev_b32 v{vTMP+7}, 2, v0
    s_nop 7
    s_nop 7
    """)
    for k in range(n):
        g(f"s_mov_b32 s{sT0}, {(slot0 + k) * 1024}")
        g.vmem(f"buffer_store_dword {file}{r0+k}, v{vTMP+7}, s[4:7], s{sT0} offen", 'dump')
    g.wait_vm_all()

def build_schedule(o):
    it = []
    order = o.get('order', 'seq')
    if order == 'seq':
        for c in range(4):
            it += [('W', c, i) for i in range(7)]
            it.append(('QX', c))
            it += [('K', c, kg) for kg in range(4)]
        it.append(('SM',))
        for c in range(4):
            it += [('V', c, kg) for kg in range(4)]
            it.append(('PX', c))
            it += [('O', c, jj) for jj in range(7)]
    return it

def main_body(g):
    o = g.o
    D = o.get('D', 4)
    items = build_schedule(o)
    stop = o.get('stop')
    slots = [x for x in items if x[0] in 'WKVO' and len(x) == 3]
    load_order = list(slots)
    free_locs = list(range(3, RING))
    loc_of = {}
    issued = 0
    def issue_upto(n):
        nonlocal issued
        while issued < min(n, len(load_order)) and free_locs:
            sl = load_order[issued]
            loc = free_locs.pop(0)
            loc_of[sl] = loc
            dma_slot(g, sl, loc)
            issued += 1
    issue_upto(D)
    g.wait_vm('x')
    g.barrier()
    g(f"v_lshlrev_b32 v{vTMP}, 4, v{vL}")
    for f in range(42):
        g.ds(f"ds_read_b128 a[{aX+4*f}:{aX+4*f+3}], v{vTMP} offset:{f*1024}", 'xr')
    g.wait_lg_all()
    if stop == 'x':
        dump_regs(g, 'a', aX, 168, 0); return
    pending_free = [0, 1, 2]
    visible = set()
    frag_list = []
    slot_pos = {sl: k for k, sl in enumerate(slots)}
    def make_visible(sl):
        g.wait_vm(sl)
        g.barrier()
        visible.add(sl)
        nonlocal pending_free
        free_locs.extend(pending_free); pending_free = []
    fq = []
    nread = 0
    LA = o.get('LA', 5)
    def ensure_frags(sl):
        if any(f[0] == sl for f in fq): return
        for k, (rd, mf) in enumerate(frags_of(sl, loc_of[sl])):
            fq.append((sl, k, rd, mf))
    def issue_reads(upto):
        nonlocal nread
        while nread < min(upto, len(fq)) and fq[nread][0] in visible:
            sl, k, rd, mf = fq[nread]
            for r in rd: emit_read(g, r, nread % NBUF, ('f', nread))
            nread += 1
    ncons = 0
    for pos, item in enumerate(items):
        kind = item[0]
        if kind in 'WKVO' and len(item) == 3:
            sl = item
            n = slot_pos[sl]
            if sl not in visible:
                make_visible(sl); ensure_frags(sl)
            nxt = slots[n + 1] if n + 1 < len(slots) else None
            if nxt is not None and nxt in loc_of and nxt not in visible and o.get('xstep', True):
                make_visible(nxt); ensure_frags(nxt)
            else:
                pass
            nf = len([f for f in fq if f[0] == sl])
            first = [k for k, f in enumerate(fq) if f[0] == sl][0]
            assert ncons == first, (ncons, first, sl)
            for k in range(first, first + nf):
                issue_reads(k + LA + 1)
                g.wait_lg(('f', k))
                b = aBUF + (k % NBUF) * 4
                for (Dd, Bop, init) in fq[k][3]:
                    g(f"v_mfma_f32_16x16x32_bf16 {Dd}, a[{b}:{b+3}], {Bop}, {'0' if init else Dd}")
                ncons += 1
            pending_free.append(loc_of[sl])
            issue_upto(n + D + 1)
        elif kind == 'QX':
            c = item[1]
            qx_write(g, c); g.barrier(); qx_read(g, c)
            if stop == ('Q', c):
                dump_regs(g, 'a', aQF, 24, 0); return
        elif kind == 'SM':
            if stop == 'S':
                dump_regs(g, 'v', vS, 192, 0); return
            softmax(g)
            g.barrier()
            stats_read(g)
            if stop == 'P':
                dump_regs(g, 'v', vS, 192, 0); dump_regs(g, 'v', vAL, 12, 192); return
        elif kind == 'PX':
            c = item[1]
            px1_write(g, c); g.barrier(); px2(g, c); g.barrier(); px3(g, c)
            if stop == ('O', c):
                dump_regs(g, 'a', aOF + (c & 1) * 48, 48, 0); return
    g(f"""
    v_lshlrev_b32 v{vTMP}, 4, v{vL}
    s_mul_i32 s{sT0}, s{sW}, 21504
    """)
    for jj in range(7):
        for qt in range(3):
            r = aOUT + (jj * 3 + qt) * 4
            g(f"s_add_u32 s{sOFF}, s{sT0}, {(jj*3+qt)*1024}")
            g.vmem(f"buffer_store_dwordx4 a[{r}:{r+3}], v{vTMP}, s[{sST}:{sST+3}], s{sOFF} offen{o.get('pol_st','')}", 'st')

def reduce_kernel():
    a = Asm()
    a(f"""
    s_cmp_ge_u32 s2, 672
    s_cbranch_scc1 L_end2
    s_load_dwordx2 s[4:5], s[0:1], 80
    s_load_dwordx2 s[6:7], s[0:1], 96
    s_mul_hi_u32 s8, s2, {(2**32 + 20)//21}
    s_mul_i32 s9, s8, 21
    s_sub_u32 s9, s2, s9
    s_mul_hi_u32 s10, s9, {(2**32 + 2)//3}
    s_mul_i32 s11, s10, 3
    s_sub_u32 s11, s9, s11
    s_and_b32 s12, s8, 15
    s_lshr_b32 s13, s8, 4
    ; rot = b mod 7
    s_mov_b32 s14, s12
    s_cmp_ge_u32 s14, 7
    s_cselect_b32 s15, 7, 0
    s_sub_u32 s14, s14, s15
    s_cmp_ge_u32 s14, 7
    s_cselect_b32 s15, 7, 0
    s_sub_u32 s14, s14, s15
    ROTFIX
    s_add_u32 s14, s14, s10
    s_cmp_ge_u32 s14, 7
    s_cselect_b32 s15, 7, 0
    s_sub_u32 s14, s14, s15
    ; s14 = jj'
    v_lshrrev_b32 v1, 6, v0
    v_and_b32 v2, 63, v0
    v_mul_u32_u24 v3, 21504, v1
    v_lshlrev_b32 v4, 4, v2
    v_add_u32 v3, v3, v4
    s_lshl_b32 s15, s9, 10
    v_add_u32 v3, s15, v3
    s_waitcnt lgkmcnt(0)
    s_mul_i32 s16, s8, {8*86016}
    s_add_u32 s20, s6, s16
    s_addc_u32 s21, s7, 0
    s_and_b32 s21, s21, 0xffff
    s_mov_b32 s22, {8*86016}
    s_mov_b32 s23, 0x20000
    """)
    for k in range(8):
        a(f"s_mov_b32 s17, {k*86016}\nbuffer_load_dwordx4 v[{8+4*k}:{11+4*k}], v3, s[20:23], s17 offen")
    a(f"""
    s_mul_i32 s16, s12, 48
    s_lshl_b32 s17, s11, 4
    s_add_u32 s16, s16, s17
    v_and_b32 v4, 15, v2
    v_add_u32 v4, s16, v4
    v_mul_u32_u24 v4, 1792, v4
    s_mul_i32 s16, s13, 896
    s_lshl_b32 s17, s14, 7
    s_add_u32 s16, s16, s17
    v_lshlrev_b32 v5, 5, v1
    v_add_u32 v4, v4, v5
    v_lshrrev_b32 v5, 4, v2
    v_lshlrev_b32 v5, 3, v5
    v_add_u32 v4, v4, v5
    v_add_u32 v4, s16, v4
    s_mov_b32 s24, s4
    s_and_b32 s25, s5, 0xffff
    s_mov_b32 s26, {16*48*896*2}
    s_mov_b32 s27, 0x20000
    s_waitcnt vmcnt(0)
    """)
    for k in range(1, 8):
        for e in range(4):
            a(f"v_add_f32 v{8+e}, v{8+e}, v{8+4*k+e}")
    a("""
    v_cvt_pk_bf16_f32 v8, v8, v9
    v_cvt_pk_bf16_f32 v9, v10, v11
    buffer_store_dwordx2 v[8:9], v4, s[24:27], 0 offen
L_end2:
    s_endpgm
    """)
    return a.text()

HEADER = open('concat_heads__gqa_block_cached__gqa_block_cached__near_ridge.s.ref').read().split('; Override')[0] if False else ''

def generate(opt):
    g = G(opt)
    prologue(g)
    main_body(g)
    g("L_end:\ns_endpgm")
    body = hazard.run(g.a.text(), verbose=opt.get('verbose', False))
    k1 = dict(name='attn_main_kernel', body=body, grid=256, block=256, lds=LDS_BYTES, vgpr=256, agpr=256, sgpr=102, list=True)
    ks = [k1]
    if not opt.get('stop'):
        rk = reduce_kernel()
        rk = rk.replace('ROTFIX', '' if opt.get('rot', True) else 's_mov_b32 s14, 0')
        ks.append(dict(name='attn_reduce_kernel', body=hazard.run(rk), grid=672, block=256, lds=0, vgpr=48, sgpr=40))
    return kernel_file(ks, header=opt.get('header', ''))

if __name__ == '__main__':
    import json
    opt = json.loads(sys.argv[1]) if len(sys.argv) > 1 else {}
    if isinstance(opt.get('stop'), list): opt['stop'] = tuple(opt['stop'])
    opt['verbose'] = True
    txt = generate(opt)
    open(sys.argv[2] if len(sys.argv) > 2 else 'attn.s', 'w').write(txt)
    print(len(txt), 'bytes', txt.count('\n'), 'lines')
```

```python
import re
def regs_of(tok):
    tok = tok.strip()
    neg = tok.lstrip('-')
    m = re.fullmatch(r'(abs\()?([vas])\[(\d+):(\d+)\]\)?', neg)
    if m: return [(m.group(2), i) for i in range(int(m.group(3)), int(m.group(4)) + 1)]
    m = re.fullmatch(r'(abs\()?([vas])(\d+)\)?', neg)
    if m: return [(m.group(2), int(m.group(3)))]
    if neg == 'vcc': return [('s', 'vcc')]
    if neg == 'm0': return [('s', 'm0')]
    if neg == 'exec': return [('s', 'exec')]
    return []
def parse(line):
    s = line.split(';')[0].strip()
    if not s or s.endswith(':') or s.startswith('.'): return None
    p = s.split(None, 1)
    op = p[0]
    ops = []
    if len(p) > 1:
        rest = p[1]
        toks = re.split(r',\s*(?![^\[]*\])', rest)
        out = []
        for t in toks:
            t = t.strip()
            out.append(t.split()[0] if t else t)
        ops = out
    return op, ops
TRANS = ('v_exp_f32', 'v_log_f32', 'v_rcp_f32', 'v_rsq_f32', 'v_sqrt_f32', 'v_sin_f32', 'v_cos_f32')
def classify(op, ops):
    R = lambda i: regs_of(ops[i]) if i < len(ops) else []
    allr = lambda lo: sum((regs_of(o) for o in ops[lo:]), [])
    if op.startswith('v_mfma'):
        return dict(kind='mfma', w=R(0), a=R(1), b=R(2), c=R(3), r=R(1) + R(2) + R(3))
    if op.startswith('ds_read') or op.startswith('ds_bpermute') or op.startswith('ds_swizzle'):
        return dict(kind='ds', w=R(0), r=allr(1))
    if op.startswith('ds_write') or op.startswith('ds_add'):
        return dict(kind='ds', w=[], r=allr(0))
    if op.startswith('buffer_load') or op.startswith('global_load'):
        if 'lds' in op or (ops and ' lds' in ' ' + ' '.join(ops)):
            return dict(kind='vmem', w=[], r=allr(0), dma=True)
        return dict(kind='vmem', w=R(0), r=allr(1))
    if op.startswith('buffer_store') or op.startswith('global_store'):
        wide = 'x4' in op or 'x3' in op
        data = R(0) if op.startswith('buffer') else R(1)
        return dict(kind='vmem', w=[], r=allr(0), store_data=data if wide else [])
    if op.startswith('buffer_atomic') or op.startswith('global_atomic'):
        return dict(kind='vmem', w=R(0), r=allr(0))
    if op.startswith('buffer_') : return dict(kind='vmem', w=[], r=[])
    if op.startswith('v_cmp'):
        return dict(kind='valu', w=R(0), r=allr(1), sw=R(0))
    if op.startswith('v_readfirstlane') or op.startswith('v_readlane'):
        return dict(kind='valu', w=R(0), r=allr(1), sw=R(0), rl=True)
    if op.startswith('v_permlane'):
        return dict(kind='valu', w=R(0) + R(1), r=R(0) + R(1), perm=True)
    if op.startswith('v_'):
        w = R(0); r = allr(1)
        if op.startswith('v_fmac') or op.startswith('v_pk_fmac'): r = r + w
        if op.startswith('v_cndmask') and len(ops) == 3: r = r + [('s', 'vcc')]
        sw = []
        if '_co_' in op: sw = R(1); r = allr(2)
        d = dict(kind='valu', w=w, r=r, sw=sw, trans=any(op.startswith(t) for t in TRANS))
        if '_dpp' in op: d['dpp'] = True
        return d
    if op.startswith('s_'):
        if op in ('s_nop',): return dict(kind='nop', w=[], r=[], n=int(ops[0]) + 1)
        if op.startswith('s_cmp') or op.startswith('s_waitcnt') or op.startswith('s_barrier') or op.startswith('s_cbranch') or op.startswith('s_branch') or op.startswith('s_endpgm') or op.startswith('s_setprio') or op.startswith('s_sleep'):
            return dict(kind='salu', w=[], r=allr(0))
        return dict(kind='salu', w=R(0), r=allr(1))
    raise ValueError('unknown op ' + op)

def run(text, verbose=False):
    out = []
    hist = []
    ninserted = 0
    for line in text.split('\n'):
        pr = parse(line)
        if pr is None:
            out.append(line); continue
        op, ops = pr
        full = line.split(';')[0]
        info = classify(op, ops)
        if ('lds' in full.split() ) and info['kind'] == 'vmem':
            info['dma'] = True; info['w'] = []; info['r'] = sum((regs_of(o) for o in ops), [])
        need = 0
        dist = 0
        for prev in reversed(hist):
            req = 0
            pw = set(prev['w']);
            cr = set(info['r']); cw = set(info['w'])
            if prev['kind'] == 'valu':
                vw = {x for x in pw if x[0] in 'va'}
                if info['kind'] == 'mfma' and vw & cr: req = max(req, 2)
                if info.get('perm') and vw & cr: req = max(req, 2)
                if info.get('dpp') and vw & cr: req = max(req, 2)
                if info.get('rl') and vw & cr: req = max(req, 1)
                if prev.get('trans') and info['kind'] in ('valu', 'mfma') and not info.get('trans') and vw & cr: req = max(req, 1)
                sw = set(prev.get('sw', []))
                if sw:
                    if info['kind'] == 'vmem' and sw & cr: req = max(req, 5)
                    if info['kind'] == 'valu' and sw & cr: req = max(req, 2)
                    if info['kind'] == 'salu' and sw & cr: req = max(req, 1) if False else max(req, 4)
                if ('s', 'exec') in pw and info['kind'] == 'mfma': req = max(req, 4)
            if prev['kind'] == 'salu':
                if ('s', 'm0') in pw and info.get('dma'): req = max(req, 1)
            if prev['kind'] == 'mfma':
                d = pw
                if info['kind'] == 'mfma':
                    if d & set(info['a'] + info['b']): req = max(req, 8)
                    c = set(info['c'])
                    if d & c and d != c: req = max(req, 6)
                    if d & cw and d != c: req = max(req, 8)
                elif info['kind'] in ('valu',):
                    if d & (cr | cw): req = max(req, 8)
                    if set(prev['c']) & cw: req = max(req, 3)
                elif info['kind'] in ('ds', 'vmem'):
                    if d & (cr | cw): req = max(req, 8)
            if prev.get('store_data'):
                sd = set(prev['store_data'])
                if sd & cw: req = max(req, 2)
            if req > dist: need = max(need, req - dist)
            dist += prev.get('n', 1)
            if dist > 24: break
        if need:
            n = need
            while n > 0:
                k = min(n, 16)
                out.append(f'    s_nop {k-1}')
                hist.append(dict(kind='nop', w=[], r=[], n=k)); n -= k; ninserted += 1
        out.append(line)
        hist.append(info)
        if len(hist) > 40: hist = hist[-40:]
    if verbose: print('hazard pass inserted', ninserted, 'nops')
    return '\n'.join(out)
```

```python
import sys, json
import gen_attn
ref = open('concat_heads__gqa_block_cached__gqa_block_cached__near_ridge.s.ref').read()
hdr = ref.split('; Override launch geometry')[0]
def make(opt, path):
    opt = dict(opt); opt['header'] = hdr
    open(path, 'w').write(gen_attn.generate(opt))
if __name__ == '__main__':
    opt = json.loads(sys.argv[1]); path = sys.argv[2]
    make(opt, path)
```
